```python
import torch

def _softmax(x, axis=-1):
    return torch.softmax(x, dim=axis)
def _gelu(x):
    return torch.nn.functional.gelu(x, approximate="tanh")
def _silu(x):
    return torch.nn.functional.silu(x)
def _sigmoid(x):
    return torch.sigmoid(x)
def _layernorm(x, axis=-1, eps=1e-5):
    m = x.mean(dim=axis, keepdim=True)
    v = x.var(dim=axis, keepdim=True, unbiased=False)
    return (x - m) / torch.sqrt(v + eps)
def _scatter_add(tgt, idx, src, axis=0):
    return tgt.clone().index_add_(axis, idx, src)
def _segment_sum(src, seg, n):
    out = torch.zeros((n,) + src.shape[1:], dtype=src.dtype)
    return out.index_add_(0, seg, src)
def _pad(x, pw):
    flat = tuple(v for pair in reversed(pw) for v in pair)
    return torch.nn.functional.pad(x, flat)

kernel_name = 'gated_mix__ssm_conv_s4d__swiglu_ffn__prompt'

def setup_inputs():

    _w = (lambda a: (lambda t: t.to(torch.bfloat16) if t.is_floating_point() else t)(torch.as_tensor(a)))
    def _A_setup():
        Bsz, L, D, N = 1, 2048, 576, 128
        return {
            "u": _w((lambda *s: torch.randn(*s, dtype=torch.bfloat16) * 0.05)(Bsz, L, D)),
            "log_A_real": _w((lambda *s: torch.randn(*s, dtype=torch.bfloat16) * 6.4)(D, N) * 0.5),
            "A_imag": _w((lambda *s: torch.randn(*s, dtype=torch.bfloat16) * 0.05)(D, N) * 3.14),
            "C_real": _w((lambda *s: torch.randn(*s, dtype=torch.bfloat16) * 0.05)(D, N) / N ** 0.5),
            "C_imag": _w((lambda *s: torch.randn(*s, dtype=torch.bfloat16) * 0.05)(D, N) / N ** 0.5),
            "log_dt": _w((lambda *s: torch.randn(*s, dtype=torch.bfloat16) * 0.05)(D) * 0.5 - 4.0),
            "D_skip": _w((lambda *s: torch.randn(*s, dtype=torch.bfloat16) * 0.05)(D)),
        }
    _A_in = _A_setup()

    def _B_setup():
        B, S, D, F = 1, 2048, 576, 4608
        return {
            "x": _w((lambda *s: torch.randn(*s, dtype=torch.bfloat16) * 0.05)(B, S, D)),
            "w_gate": _w((lambda *s: torch.randn(*s, dtype=torch.bfloat16) * 0.05)(D, F)),
            "w_up": _w((lambda *s: torch.randn(*s, dtype=torch.bfloat16) * 0.05)(D, F)),
            "w_down": _w((lambda *s: torch.randn(*s, dtype=torch.bfloat16) * 0.05)(F, D)),
        }
    _B_in = _B_setup()

    return {
        "A_u": _A_in["u"],
        "A_log_A_real": _A_in["log_A_real"],
        "A_A_imag": _A_in["A_imag"],
        "A_C_real": _A_in["C_real"],
        "A_C_imag": _A_in["C_imag"],
        "A_log_dt": _A_in["log_dt"],
        "A_D_skip": _A_in["D_skip"],
        "B_x": _B_in["x"],
        "B_w_gate": _B_in["w_gate"],
        "B_w_up": _B_in["w_up"],
        "B_w_down": _B_in["w_down"],
        "gate_w": _w((lambda *s: torch.randn(*s, dtype=torch.bfloat16) * 0.05)(576) * 16.0),
    }

def reference(A_u, A_log_A_real, A_A_imag, A_C_real, A_C_imag, A_log_dt, A_D_skip, B_x, B_w_gate, B_w_up, B_w_down, gate_w):
    def _A_ref(u, log_A_real, A_imag, C_real, C_imag, log_dt, D_skip):
        L = u.shape[1]
        dt = torch.exp(log_dt)
        A = -torch.exp(log_A_real) + 1j * A_imag
        C = (C_real + 1j * C_imag) * dt[:, None]
        pos = (lambda x, dt: x.to(dt))(torch.arange(L), log_dt.dtype)
        P = torch.exp((A * dt[:, None])[:, :, None] * pos[None, None, :])
        K = 2.0 * torch.einsum("dn,dnl->dl", C, P).real
        L2 = 2 * L
        u_t = (lambda x, *d: x.permute(*d))(u, 0, 2, 1)
        Kf = (lambda x, *a, **k: torch.fft.rfft(x.float(), *a, **k))(K, L2)
        Uf = (lambda x, *a, **k: torch.fft.rfft(x.float(), *a, **k))(u_t, L2)
        y = (lambda x, *a, **k: torch.fft.irfft(x, *a, **k).to(torch.bfloat16))(Uf * Kf[None, :, :], L2)[:, :, :L]
        y = (lambda x, *d: x.permute(*d))(y, 0, 2, 1)
        return y + u * D_skip[None, None, :]

    def _B_ref(x, w_gate, w_up, w_down):
        g = _silu(x @ w_gate)
        u = x @ w_up
        return (g * u) @ w_down

    x = A_u
    g = _sigmoid((x * gate_w).sum(-1, keepdims=True))
    a = _A_ref(x, A_log_A_real, A_A_imag, A_C_real, A_C_imag, A_log_dt, A_D_skip)
    b = _B_ref(x, B_w_gate, B_w_up, B_w_down)
    return g * a + (1 - g) * b
```

```python
import sys, math, json
sys.path.insert(0, "tools")
from asmlib import *

def stamp_begin(a):
    a("""
    s_cmp_ge_u32 s2, 256
    s_cbranch_scc1 L_end%s
    s_load_dwordx2 s[4:5], s[0:1], 112
    s_memrealtime s[20:21]
    s_memtime s[22:23]
    v_lshrrev_b32 v1, 6, v0
    v_and_b32 v2, 63, v0
    s_nop 0
    v_readfirstlane_b32 s30, v1
    v_lshlrev_b32 v2, 4, v2
    s_waitcnt lgkmcnt(0)
    s_mov_b32 s8, s4
    s_mov_b32 s9, s5
    s_mov_b32 s10, 0x10000000
    s_mov_b32 s11, 0x00020000
    """ % a.sfx)
def stamp_end(a, off):
    a(f"""
    s_waitcnt vmcnt(0)
    s_barrier
    s_memrealtime s[26:27]
    s_memtime s[28:29]
    s_waitcnt lgkmcnt(0)
    s_cmp_lg_u32 s30, 0
    s_cbranch_scc1 L_end{a.sfx}
    v_mov_b32 v4, s20
    v_mov_b32 v5, s26
    v_mov_b32 v6, s22
    v_mov_b32 v7, s28
    s_lshl_b32 s25, s2, 4
    s_add_u32 s25, s25, {off}
    v_mov_b32 v3, 0
    buffer_store_dwordx4 v[4:7], v3, s[8:11], s25 offen
    s_waitcnt vmcnt(0)
    L_end{a.sfx}:
    s_endpgm
    """)

def gen(kb_per_wave, wflag, rflag, base):
    a = Asm(); a.sfx = "w"
    stamp_begin(a)
    per_wg = kb_per_wave * 4 * 1024
    a(f"""
    s_mul_i32 s14, s2, {per_wg}
    s_mul_i32 s15, s30, {kb_per_wave*1024}
    s_add_u32 s14, s14, s15
    s_add_u32 s14, s14, {base}
    v_mov_b32 v8, v0
    v_mov_b32 v9, v2
    v_mov_b32 v10, s2
    v_mov_b32 v11, s20
    """)
    for i in range(kb_per_wave):
        a(f"buffer_store_dwordx4 v[8:11], v2, s[8:11], s14 offen {wflag}")
        a(f"s_add_u32 s14, s14, 1024")
    stamp_end(a, 0)
    kw = kernel_text("w_kernel", a.text(), 512, accum=256)
    a = Asm(); a.sfx = "r"
    stamp_begin(a)
    sl = per_wg // 16
    a(f"""
    s_lshr_b32 s12, s2, 4
    s_and_b32 s13, s2, 15
    s_mul_i32 s14, s12, {per_wg*16}
    s_mul_i32 s15, s13, {sl}
    s_add_u32 s14, s14, s15
    s_mul_i32 s15, s30, {per_wg*4}
    s_add_u32 s14, s14, s15
    s_add_u32 s14, s14, {base}
    """)
    n = 0
    for srcw in range(4):
        for i in range(sl // 1024):
            a(f"s_add_u32 s25, s14, {srcw*per_wg + i*1024}")
            a(f"buffer_load_dwordx4 v[{8+4*n}:{11+4*n}], v2, s[8:11], s25 offen {rflag}")
            n += 1
    stamp_end(a, 4096)
    kr = kernel_text("r_kernel", a.text(), 512, accum=256)
    return file_text([("w_kernel", 256, 256, 90*1024), ("r_kernel", 256, 256, 90*1024)], [kw, kr]), per_wg

if __name__ == "__main__":
    cfgs = {
      "w36_plain": (36, "", "", 0x1000000),
      "w36_nt": (36, "nt", "", 0x1000000),
      "w36_ntnt": (36, "nt", "nt", 0x1000000),
      "w36_sc1": (36, "sc1", "sc1", 0x1000000),
      "w36_sc01": (36, "sc0 sc1", "sc0 sc1", 0x1000000),
      "w36_plain_rnt": (36, "", "nt", 0x1000000),
      "w16_plain": (16, "", "", 0x1000000),
      "w16_sc1": (16, "sc1", "sc1", 0x1000000),
      "w8_plain": (8, "", "", 0x1000000),
      "w8_sc1": (8, "sc1", "sc1", 0x1000000),
      "w4_plain": (4, "", "", 0x1000000),
    }
    meta = {}
    for n, c in cfgs.items():
        t, nb = gen(*c)
        open(f"wr_{n}.s", "w").write(t)
        meta[n] = nb
    json.dump(meta, open("wr_meta.json", "w"))
```

```python
NAME = "gated_mix__ssm_conv_s4d__swiglu_ffn__prompt"

class Asm:
    def __init__(self):
        self.lines = []
    def __call__(self, s):
        for l in s.split("\n"):
            l = l.strip()
            if l:
                self.lines.append(("" if l.endswith(":") else "    ") + l)
    def text(self):
        return "\n".join(self.lines) + "\n"

def kernel_text(name, body, vgpr, sgpr=102, accum=None):
    if accum is None:
        accum = min(256, (vgpr + 3) // 4 * 4)
    return f""".text
.globl {name}
.p2align 8
.type {name},@function
{name}:
{body}
.section .rodata,"a"
.p2align 6
.amdhsa_kernel {name}
  .amdhsa_next_free_vgpr {vgpr}
  .amdhsa_next_free_sgpr {sgpr}
  .amdhsa_accum_offset {accum}
  .amdhsa_group_segment_fixed_size 0
  .amdhsa_kernarg_size 120
  .amdhsa_user_sgpr_count 2
  .amdhsa_user_sgpr_kernarg_segment_ptr 1
  .amdhsa_system_sgpr_workgroup_id_x 1
  .amdhsa_float_denorm_mode_32 3
.end_amdhsa_kernel
"""

def file_text(launches, kernels, header=""):
    s = header
    for k, g, b, lds in launches:
        s += f"; @launch kernel={k} grid=({g},1,1) block=({b},1,1) lds={lds}\n"
    s += '.amdgcn_target "amdgcn-amd-amdhsa--gfx950"\n'
    for k in kernels:
        s += k
    return s
```

```python
import sys, math, json
sys.path.insert(0, "tools")
from asmlib import *
from gen_wr import stamp_begin, stamp_end

def gen(kind, stride=2):
    a = Asm(); a.sfx = "m"
    stamp_begin(a)
    a("""
    v_lshlrev_b32 v3, 2, v0
    v_lshlrev_b32 v4, 1, v0
    """)
    for j in range(16):
        a(f"v_add_u32 v5, {j*512}, v4\n v_add_u32 v6, 1, v5\n v_lshlrev_b32 v6, 16, v6\n v_or_b32 v5, v5, v6\n ds_write_b32 v3, v5 offset:{j*1024}")
    a("s_waitcnt lgkmcnt(0)\n s_barrier")
    a(f"""
    v_and_b32 v8, 15, v0
    v_mul_u32_u24 v8, {stride}, v8
    v_bfe_u32 v9, v0, 4, 2
    v_lshlrev_b32 v9, 4, v9
    v_add_u32 v8, v8, v9
    """)
    for i in range(16, 100): a(f"v_mov_b32 v{i}, 1.0")
    a("s_barrier\n s_memrealtime s[20:21]\n s_memtime s[22:23]\n s_waitcnt lgkmcnt(0)")
    a(f"s_mov_b32 s24, 32\n L_loop:")
    N = 64
    for u in range(N):
        r = 16 + 4 * (u % 16)
        if kind == "b128":
            a(f"ds_read_b128 v[{r}:{r+3}], v8 offset:{(u*64) % 8192}")
            if u % 4 == 3: a("s_waitcnt lgkmcnt(8)")
        elif kind == "b64x2":
            a(f"ds_read_b64 v[{r}:{r+1}], v8 offset:{(u*64) % 8192}")
            a(f"ds_read_b64 v[{r+2}:{r+3}], v8 offset:{(u*64) % 8192 + 8}")
            if u % 2 == 1: a("s_waitcnt lgkmcnt(8)")
        elif kind == "fma":
            a(f"v_fma_f32 v{16+u%32}, v{50+u%8}, v{60+u%8}, v{16+u%32}")
        elif kind == "pkfma":
            r = 16 + 2 * (u % 16)
            a(f"v_pk_fma_f32 v[{r}:{r+1}], v[{50+2*(u%4)}:{51+2*(u%4)}], v[{60+2*(u%4)}:{61+2*(u%4)}], v[{r}:{r+1}]")
        elif kind == "pkf16":
            a(f"v_pk_fma_f16 v{16+u%32}, v{50+u%8}, v{60+u%8}, v{16+u%32}")
        elif kind == "mf_pkf16":
            c = 160 + 4 * (u % 8)
            a(f"v_mfma_f32_16x16x32_bf16 v[{c}:{c+3}], v[80:83], v[84:87], v[{c}:{c+3}]")
            a(f"v_pk_mul_f16 v{16+u%32}, v{50+u%8}, v{60+u%8} op_sel:[0,0] op_sel_hi:[1,0]")
            a(f"v_pk_fma_f16 v{16+u%32}, v{50+u%8}, v{60+u%8}, v{16+u%32} op_sel:[1,1,0] op_sel_hi:[0,1,1] neg_lo:[1,0,0]")
        elif kind == "mf_wr64":
            c = 160 + 4 * (u % 8)
            a(f"v_mfma_f32_16x16x32_bf16 v[{c}:{c+3}], v[80:83], v[84:87], v[{c}:{c+3}]")
            a(f"v_pk_mul_f16 v{16+u%32}, v{50+u%8}, v{60+u%8} op_sel:[0,0] op_sel_hi:[1,0]")
            if u % 2 == 0: a(f"ds_write_b64 v10, v[90:91] offset:{16384 + (u*528) % 16384}")
            else: a(f"v_pk_fma_f16 v{16+u%32}, v{50+u%8}, v{60+u%8}, v{16+u%32} op_sel:[1,1,0] op_sel_hi:[0,1,1] neg_lo:[1,0,0]")
    a("""
    s_sub_u32 s24, s24, 1
    s_cmp_lg_u32 s24, 0
    s_cbranch_scc1 L_loop
    s_waitcnt lgkmcnt(0)
    """)
    a("""
    ds_read_b128 v[16:19], v8 offset:0
    s_waitcnt lgkmcnt(0)
    s_cmp_lg_u32 s2, 0
    s_cbranch_scc1 L_nodump
    v_lshlrev_b32 v9, 4, v0
    s_mov_b32 s25, 0x20000
    buffer_store_dwordx4 v[16:19], v9, s[8:11], s25 offen
    L_nodump:
    """)
    stamp_end(a, 0)
    t = a.text().replace("    v_add_u32 v8, v8, v9\n", "    v_add_u32 v8, v8, v9\n    v_and_b32 v10, 63, v0\n    v_lshlrev_b32 v10, 3, v10\n", 1)
    k = kernel_text("m_kernel", t, 512, accum=256)
    return file_text([("m_kernel", 256, 256, 140*1024)], [k]), 32 * N

if __name__ == "__main__":
    cfgs = {
      "l_b128_s64": ("b128", 64), "l_b128_s16": ("b128", 16), "l_b128_s8": ("b128", 8), "l_b128_s4": ("b128", 4), "l_b128_s2": ("b128", 2),
      "l_b64_s8": ("b64x2", 8), "l_b64_s4": ("b64x2", 4), "l_b64_s2": ("b64x2", 2),
      "l_fma": ("fma",), "l_pkfma": ("pkfma",), "l_pkf16": ("pkf16",), "l_mf_pkf16": ("mf_pkf16",), "l_mf_wr64": ("mf_wr64",),
    }
    meta = {}
    for n, c in cfgs.items():
        t, nb = gen(*c)
        open(f"mf_{n}.s", "w").write(t)
        meta[n] = nb
    json.dump(meta, open("mf_meta.json", "w"))
```

```python
import sys, math, json
sys.path.insert(0, "tools")
from asmlib import *
from gen_wr import stamp_begin, stamp_end

def gen(pat, nw=4):
    a = Asm(); a.sfx = "m"
    stamp_begin(a)
    a(f"""
    v_and_b32 v8, 63, v0
    v_lshlrev_b32 v9, 4, v8
    v_lshlrev_b32 v8, 3, v8
    s_mul_i32 s15, s30, 16384
    v_add_u32 v8, s15, v8
    v_add_u32 v9, s15, v9
    s_mov_b32 m0, s15
    """)
    for i in range(16, 130): a(f"v_mov_b32 v{i}, 1.0")
    a(f"s_cmp_ge_u32 s30, {nw}\n s_cbranch_scc1 L_skip")
    a("s_memrealtime s[20:21]\n s_memtime s[22:23]\n s_waitcnt lgkmcnt(0)")
    a(f"s_mov_b32 s24, 16\n L_loop:")
    N = 64; k = 0
    for u in range(N):
        for ch in pat:
            k += 1; r = 16 + 4 * (k % 12); o = (k * 1024) % 16384
            if ch == "M":
                c = 160 + 4 * ((k // 4) % 8)
                a(f"v_mfma_f32_16x16x32_bf16 v[{c}:{c+3}], v[80:83], v[84:87], v[{c}:{c+3}]")
            if ch == "B":
                a(f"v_mfma_f32_32x32x16_bf16 v[200:215], v[80:83], v[84:87], v[200:215]")
            if ch == "v": a(f"v_mul_f32 v{100+k%8}, v{90+k%4}, v95")
            if ch == "p": a(f"v_pk_fma_f16 v{100+k%8}, v{90+k%4}, v95, v96")
            if ch == "t": a(f"v_exp_f32 v{110+k%8}, v{90+k%4}")
            if ch == "r": a(f"ds_read_b64 v[{r}:{r+1}], v8 offset:{o}")
            if ch == "R": a(f"ds_read_b128 v[{r}:{r+3}], v9 offset:{o}")
            if ch == "w": a(f"ds_write_addtid_b32 v{90+k%4} offset:{o}")
            if ch == "W": a(f"ds_write_b64 v8, v[90:91] offset:{o}")
            if ch == "s": a(f"s_add_u32 s40, s41, 5")
            if ch == "c": a(f"s_waitcnt lgkmcnt(8)")
    a("""
    s_sub_u32 s24, s24, 1
    s_cmp_lg_u32 s24, 0
    s_cbranch_scc1 L_loop
    s_waitcnt lgkmcnt(0)
    L_skip:
    """)
    stamp_end(a, 0)
    k = kernel_text("m_kernel", a.text(), 512, accum=256)
    return file_text([("m_kernel", 256, 256, 140*1024)], [k]), 16 * N

if __name__ == "__main__":
    pats = ["Mvv", "Mvvv", "Mrvv", "Mvvr", "Msvv", "Mvvs", "Mcvv", "Mvvc", "Mrr", "Mrrr", "Mrt", "Mtr", "Mst", "Mtv", "Mwvv", "Mvvw", "Mvw", "Mwv",
            "Mrsv", "Mrpp", "Mppp", "Mpppp", "Mrppp", "Mrrpp", "Mwwpp", "Mppww", "MWv", "MvW", "MW", "MRvv", "MRrv", "Bvvvvvv", "Brvvvvvv", "BWvv", "Msss", "Mssss", "Mrsvv"]
    meta = {}
    for p in pats:
        t, nb = gen(p)
        n = "g_" + "".join(c if c.islower() else c + c for c in p)
        open(f"mf_{n}.s", "w").write(t)
        meta[n] = nb
    json.dump(meta, open("mf_meta.json", "w"))
```
